```python
import torch

def _softmax(x, axis=-1):
    return torch.softmax(x, dim=axis)
def _gelu(x):
    return torch.nn.functional.gelu(x, approximate="tanh")
def _silu(x):
    return torch.nn.functional.silu(x)
def _sigmoid(x):
    return torch.sigmoid(x)
def _layernorm(x, axis=-1, eps=1e-5):
    m = x.mean(dim=axis, keepdim=True)
    v = x.var(dim=axis, keepdim=True, unbiased=False)
    return (x - m) / torch.sqrt(v + eps)
def _scatter_add(tgt, idx, src, axis=0):
    return tgt.clone().index_add_(axis, idx, src)
def _segment_sum(src, seg, n):
    out = torch.zeros((n,) + src.shape[1:], dtype=src.dtype)
    return out.index_add_(0, seg, src)
def _pad(x, pw):
    flat = tuple(v for pair in reversed(pw) for v in pair)
    return torch.nn.functional.pad(x, flat)

kernel_name = 'recurrent_scan__gqa_block_cached__dense_activation_relu__prompt'

def setup_inputs():

    _w = (lambda a: (lambda t: t.to(torch.bfloat16) if t.is_floating_point() else t)(torch.as_tensor(a)))
    def _A_setup():
        B, Sq, D = 1, 2048, 640
        Hq, Hkv, Sk, Dh = 32, 32, 2048, 192
        assert Hq % Hkv == 0, (Hq, Hkv)
        return {
            "x": _w((lambda *s: torch.randn(*s, dtype=torch.bfloat16) * 0.05)(B, Sq, D)),
            "k_cache": _w((lambda *s: torch.randn(*s, dtype=torch.bfloat16) * 1.6)(B, Hkv, Sk, Dh)),
            "v_cache": _w((lambda *s: torch.randn(*s, dtype=torch.bfloat16) * 0.2)(B, Hkv, Sk, Dh)),
            "wq": _w((lambda *s: torch.randn(*s, dtype=torch.bfloat16) * 1.6)(D, Hq * Dh) * (D ** -0.5)),
            "wo": _w((lambda *s: torch.randn(*s, dtype=torch.bfloat16) * 0.2)(Hq * Dh, D) * ((Hq * Dh) ** -0.5)),
        }
    _A_in = _A_setup()

    def _B_setup():
        B, S, D, Dff = 1, 2048, 640, 1536
        return {
            "x": _w((lambda *s: torch.randn(*s, dtype=torch.bfloat16) * 0.05)(B, S, D)),
            "w1": _w((lambda *s: torch.randn(*s, dtype=torch.bfloat16) * 0.1)(D, Dff)),
            "w2": _w((lambda *s: torch.randn(*s, dtype=torch.bfloat16) * 0.1)(Dff, D)),
        }
    _B_in = _B_setup()

    return {
        "A_x": _A_in["x"],
        "A_k_cache": _A_in["k_cache"],
        "A_v_cache": _A_in["v_cache"],
        "A_wq": _A_in["wq"],
        "A_wo": _A_in["wo"],
        "B_x": _B_in["x"],
        "B_w1": _B_in["w1"],
        "B_w2": _B_in["w2"],
    }

def reference(A_x, A_k_cache, A_v_cache, A_wq, A_wo, B_x, B_w1, B_w2):
    def _A_ref(x, k_cache, v_cache, wq, wo):
        B, Sq, D = x.shape
        Hq, Dh = 32, 192
        Hkv = k_cache.shape[1]
        rep = Hq // Hkv
        q = (lambda x, *d: x.permute(*d))((x @ wq).reshape(B, Sq, Hq, Dh), 0, 2, 1, 3)
        k = (lambda x, n, axis: torch.repeat_interleave(x, n, dim=axis))(k_cache, rep, axis=1)
        v = (lambda x, n, axis: torch.repeat_interleave(x, n, dim=axis))(v_cache, rep, axis=1)
        scores = torch.einsum("bhqd,bhkd->bhqk", q, k) * (Dh ** -0.5)
        p = _softmax(scores, axis=-1)
        o = torch.einsum("bhqk,bhkd->bhqd", p, v)
        return (lambda x, *d: x.permute(*d))(o, 0, 2, 1, 3).reshape(B, Sq, Hq * Dh) @ wo

    def _B_ref(x, w1, w2):
        h = torch.einsum("bsd,df->bsf", x, w1)
        zero = torch.zeros_like(h)
        h = torch.maximum(h, zero)
        return torch.einsum("bsf,fd->bsd", h, w2)

    x = A_x
    xn = _layernorm(x, axis=-1)
    s = _A_ref(xn, A_k_cache, A_v_cache, A_wq, A_wo)
    g = _silu(_B_ref(xn, B_w1, B_w2))
    return x + s * g
```

```python
import re

def regs(spec):
    spec = spec.strip()
    neg = spec.startswith('-')
    if neg: spec = spec[1:]
    m = re.fullmatch(r'abs\((.*)\)', spec)
    if m: spec = m.group(1)
    m = re.fullmatch(r'([vas])(\d+)', spec)
    if m: return {m.group(1) + m.group(2)}
    m = re.fullmatch(r'([vas])\[(\d+):(\d+)\]', spec)
    if m: return {m.group(1) + str(i) for i in range(int(m.group(2)), int(m.group(3)) + 1)}
    if spec in ('vcc', 'm0', 'exec', 'scc'): return {spec}
    return set()

def R(kind, lo, n=1):
    return f"{kind}{lo}" if n == 1 else f"{kind}[{lo}:{lo+n-1}]"

TRANS = ('v_exp_f32', 'v_log_f32', 'v_rcp_f32', 'v_rsq_f32', 'v_sqrt_f32', 'v_sin_f32', 'v_cos_f32')

class I:
    __slots__ = ('text', 'op', 'kind', 'w', 'r', 'passes', 'srcc', 'tag', 'need')
    def __init__(self, text, tag=None):
        self.text = text; self.tag = tag; self.need = None
        t = text.split(';')[0].strip()
        self.w = set(); self.r = set(); self.passes = 0; self.srcc = set()
        if not t or t.endswith(':') or t.startswith('.'):
            self.op = ''; self.kind = 'label'; return
        parts = t.split(None, 1)
        op = parts[0]; self.op = op
        rest = parts[1] if len(parts) > 1 else ''
        ops = [o.strip() for o in rest.split(',')] if rest else []
        ops = [o.split()[0] if o and not o.startswith('abs') else o for o in ops]
        if op.startswith('v_mfma'):
            self.kind = 'mfma'
            self.passes = 8 if '32x32' in op else 4
            self.w = regs(ops[0]); self.r = regs(ops[1]) | regs(ops[2]) | regs(ops[3]); self.srcc = regs(ops[3])
        elif op.startswith('ds_read') or op.startswith('ds_bpermute'):
            self.kind = 'ds'; self.w = regs(ops[0])
            for o in ops[1:]: self.r |= regs(o)
        elif op.startswith('ds_'):
            self.kind = 'ds'
            for o in ops: self.r |= regs(o)
        elif op.startswith('buffer_load') or op.startswith('global_load'):
            self.kind = 'vmem'
            if ' lds' in (' ' + rest) and op.startswith('buffer') or 'load_lds' in op:
                for o in ops: self.r |= regs(o)
                self.r.add('m0')
            else:
                self.w = regs(ops[0])
                for o in ops[1:]: self.r |= regs(o)
        elif op.startswith('buffer_store') or op.startswith('global_store') or op.startswith('buffer_atomic') or op.startswith('global_atomic'):
            self.kind = 'vmem'
            for o in ops: self.r |= regs(o)
        elif op.startswith('buffer_'):
            self.kind = 'vmem'
        elif op.startswith('v_'):
            self.kind = 'trans' if op.startswith(TRANS) else 'valu'
            if op.startswith('v_cmp'):
                self.w = regs(ops[0])
                for o in ops[1:]: self.r |= regs(o)
            elif op.startswith('v_permlane') :
                self.w = regs(ops[0]) | regs(ops[1]); self.r = set(self.w)
            elif op.startswith(('v_add_co', 'v_addc_co', 'v_sub_co')):
                self.w = regs(ops[0]) | regs(ops[1])
                for o in ops[2:]: self.r |= regs(o)
            else:
                self.w = regs(ops[0])
                for o in ops[1:]: self.r |= regs(o)
                if op.startswith(('v_fmac', 'v_dot2c', 'v_writelane')) or 'dpp' in op or 'row_' in rest: self.r |= self.w
        elif op.startswith('s_waitcnt'): self.kind = 'wait'
        elif op == 's_nop': self.kind = 'nop'
        elif op.startswith(('s_cbranch', 's_branch', 's_endpgm', 's_barrier', 's_setprio', 's_sleep')): self.kind = 'ctl'
        elif op.startswith(('s_load', 's_memtime', 's_memrealtime')):
            self.kind = 'smem'; self.w = regs(ops[0])
            for o in ops[1:]: self.r |= regs(o)
        else:
            self.kind = 'salu'
            if op.startswith('s_cmp'):
                for o in ops: self.r |= regs(o)
            else:
                self.w = regs(ops[0]) if ops else set()
                for o in ops[1:]: self.r |= regs(o)
    def states(self):
        if self.kind == 'label': return 0
        if self.kind == 'nop': return int(self.text.split()[1], 0) + 1
        return 1

def fix_hazards(parts):
    total = 0
    while True:
        flat = [(pi, k) for pi, p in enumerate(parts) for k in range(len(p))]
        seq = [parts[pi][k] for pi, k in flat]
        found = []
        check_hazards(seq, found=found)
        if not found: return total
        best = {}
        for j, miss in found: best[j] = max(best.get(j, 0), miss)
        last = None
        todo = []
        for j in sorted(best):
            if last is None or j - last > 24: todo.append(j); last = j
        for j in reversed(todo):
            pi, k = flat[j]; n = best[j]
            parts[pi].insert(k, I(f"s_nop {n - 1}")); total += 1

def check_hazards(seq, name='', found=None):
    msgs = []
    n = len(seq)
    WIN = 24
    NOSCC = ('s_mov', 's_mul_i32', 's_mul_hi', 's_cselect', 's_movk', 's_getreg', 's_setreg', 's_cmov')
    lastscc = None
    for j, c in enumerate(seq):
        if c.op.startswith(('s_cselect', 's_cbranch_scc')):
            if lastscc is None or not lastscc.op.startswith(('s_cmp', 's_bitcmp')):
                msgs.append(f"{name} SCC consumer [{j}] {c.text} follows {lastscc.text if lastscc else None}")
        if c.op.startswith('s_addc'):
            if lastscc is None or not lastscc.op.startswith(('s_add_u32', 's_addc')):
                msgs.append(f"{name} carry consumer [{j}] {c.text} follows {lastscc.text if lastscc else None}")
        if c.kind == 'salu' and not c.op.startswith(NOSCC): lastscc = c
    for j, c in enumerate(seq):
        if c.kind in ('label', 'nop', 'wait', 'ctl'): continue
        dist = 0
        i = j - 1
        while i >= 0 and dist < WIN:
            p = seq[i]
            need = 0
            if p.kind == 'mfma':
                big = p.passes == 8
                if c.kind == 'mfma':
                    if p.w & c.srcc:
                        same = (p.w == c.srcc and p.passes == c.passes)
                        need = 0 if same else (10 if big else 6)
                    if p.w & (c.r - c.srcc) or (p.w & c.r and not (p.w & c.srcc)):
                        need = max(need, 12 if big else 8)
                    if (p.w & c.w) and not (p.w & c.srcc):
                        need = max(need, 12 if big else 8)
                else:
                    if p.w & (c.r | c.w): need = 12 if big else 8
                    if c.kind in ('valu', 'trans') and (p.srcc & c.w): need = max(need, 7 if big else 3)
            elif p.kind in ('valu', 'trans'):
                vw = {x for x in p.w if x[0] in 'va' and x != 'vcc'}
                sw = {x for x in p.w if x[0] == 's' or x == 'vcc'}
                if c.kind == 'mfma' and vw & c.r: need = 2
                if p.kind == 'trans' and c.kind == 'valu' and vw & c.r: need = max(need, 1)
                if c.op.startswith('v_permlane') and vw & c.r: need = max(need, 2)
                if c.op.startswith(('v_readlane', 'v_readfirstlane')) and vw & c.r: need = max(need, 1)
                if ('dpp' in c.op or 'row_' in c.text) and vw & c.r: need = max(need, 2)
                if c.kind == 'vmem' and sw & c.r: need = max(need, 5)
                if c.kind in ('valu', 'trans') and sw & c.r: need = max(need, 2)
                if c.kind in ('salu',) and sw & c.r: need = max(need, 1)
            elif p.kind == 'salu':
                if 'm0' in p.w and 'm0' in c.r and c.kind == 'vmem': need = 1
            elif p.kind == 'vmem':
                if ('store' in p.op) and ('x4' in p.op or 'x3' in p.op) and c.kind in ('valu', 'trans', 'mfma') and (p.r & c.w):
                    need = 2
            if need > dist:
                if found is not None: found.append((j, need - dist))
                msgs.append(f"{name} hazard need {need} have {dist}: [{i}] {p.text.strip()}  ->  [{j}] {c.text.strip()}")
            dist += p.states()
            i -= 1
    return msgs

def assign_waits(seq):
    lg = []; vm = []
    for it in seq:
        if it.kind == 'ds': lg.append(it.tag)
        elif it.kind == 'vmem': vm.append(it.tag)
        elif it.kind == 'smem': lg.append('SMEM')
        elif it.kind == 'wait':
            if it.need is None:
                m = re.search(r'lgkmcnt\((\d+)\)', it.text)
                if m:
                    k = int(m.group(1)); lg = lg[len(lg) - k:] if k else []
                m = re.search(r'vmcnt\((\d+)\)', it.text)
                if m:
                    k = int(m.group(1)); vm = vm[len(vm) - k:] if k else []
                continue
            parts = []
            for key, q, cap in (('vm', vm, 63), ('lgkm', lg, 15)):
                tags = it.need.get(key)
                if not tags: continue
                idx = [k for k, t in enumerate(q) if t in tags]
                if not idx: continue
                keep = len(q) - 1 - max(idx)
                if key == 'lgkm' and 'SMEM' in q: keep = 0
                keep = min(keep, cap)
                parts.append(f"{'vmcnt' if key == 'vm' else 'lgkmcnt'}({keep})")
                del q[:len(q) - keep]
            it.text = ("s_waitcnt " + " ".join(parts)) if parts else ""
            if not parts: it.kind = 'label'

def W(lgkm=None, vm=None):
    it = I("s_waitcnt"); it.kind = 'wait'
    it.need = {}
    if lgkm: it.need['lgkm'] = set(lgkm)
    if vm: it.need['vm'] = set(vm)
    return it

def text(seq):
    return "\n".join(i.text for i in seq if i.text) + "\n"

def L(s, tag=None):
    return [I(x.strip(), tag) for x in s.strip().split("\n") if x.strip()]

def dominates(steady, actual):
    a = [l for l in steady.split("\n") if l]; b = [l for l in actual.split("\n") if l]
    def parse(l): return {k: int(v) for k, v in re.findall(r'(vmcnt|lgkmcnt)\((\d+)\)', l)}
    i = j = 0
    while i < len(a) or j < len(b):
        wa = {}; wb = {}
        while i < len(a) and a[i].startswith("s_waitcnt"):
            for k, v in parse(a[i]).items(): wa[k] = min(v, wa.get(k, 99))
            i += 1
        while j < len(b) and b[j].startswith("s_waitcnt"):
            for k, v in parse(b[j]).items(): wb[k] = min(v, wb.get(k, 99))
            j += 1
        for k, v in wb.items():
            if wa.get(k, 99) > v: return False
        if i == len(a) and j == len(b): break
        if i == len(a) or j == len(b) or a[i] != b[j]: return False
        i += 1; j += 1
    return True
```

```python
from asmlib import *

KSLOT = 12288
class Attn:
    def __init__(self, shape=32, ring=6, dist=8, cap=None, vbase=49152, kbase=0, v0=16, dma_start=1, dma_step=None,
                 bar_gap=0, wait_pair=True, sm_start=None, sm_len=None, static_p=False, nolds=False, pk=False, ones=False, chain=False):
        self.static_p = static_p; self.nolds = nolds; self.pk = pk; self.ones = ones; self.chain = chain
        self.shape = shape
        self.nq = 2 if shape == 32 else 4
        self.per = self.nq
        self.ng = 24 * self.per
        self.ring = ring
        self.dist = dist if shape == 32 else dist * 2
        self.cap = cap if cap else (24 if shape == 32 else 8)
        self.vbase = vbase; self.kbase = kbase
        self.wait_pair = wait_pair
        self.bar_gap = bar_gap
        self.dma_start = dma_start if shape == 32 else dma_start * 2
        self.dma_step = dma_step if dma_step else (3 if shape == 32 else 6)
        self.sm_start = sm_start; self.sm_len = sm_len
        p = v0
        def al(n, a=1):
            nonlocal p
            p = (p + a - 1) // a * a
            r = p; p += n; return r
        self.vS = [al(32, 4), al(32, 4)]
        self.nneg = 32 if shape == 32 else 16
        self.vNeg = al(self.nneg, 4)
        self.vQ = al(32, 4)
        self.vRing = al(4 * ring, 4)
        self.vL = al(self.nq)
        self.nKA = 4 if shape == 32 else 2
        self.nVA = 2 if shape == 32 else 4
        self.vKA = al(self.nKA); self.vVA = al(self.nVA)
        self.vDK = al(3); self.vDV = al(3)
        self.vT = al(8, 4)
        self.vend = p
        self.sK = 8; self.sV = 12
        self.sOffK = 20; self.sOffV = 21; self.sM0K = 22; self.sM0V = 23; self.sCnt = 24

    def Qf(self, qt, j):
        nj = 12 if self.shape == 32 else 6
        f = qt * nj + j
        return R('a', 192 + 4 * f, 4) if f < 16 else R('v', self.vQ + 4 * (f - 16), 4)
    def Qreg(self, f):
        return ('a', 192 + 4 * f) if f < 16 else ('v', self.vQ + 4 * (f - 16))
    def Oa(self, qt, dt):
        if self.shape == 32: return 96 * qt + 16 * dt
        return 48 * qt + 4 * dt
    def ring_reg(self, U):
        return self.vRing + 4 * (U % self.ring)

    def setup(self):
        T = self.vT; s = []
        a = s.append
        a(f"v_and_b32 v1, 63, v0")
        a(f"v_lshrrev_b32 v2, 6, v0")
        a("s_nop 0")
        a(f"v_readfirstlane_b32 s25, v2")
        a("s_nop 0")
        t0, t1, t2, t3, t4 = T, T + 1, T + 2, T + 3, T + 4
        a(f"s_mul_i32 s26, s25, 3072")
        a(f"s_lshl_b32 s27, s25, 3")
        for i in range(3):
            a(f"v_lshrrev_b32 v{t0}, 3, v1")
            a(f"v_add_u32 v{t0}, {8*i}, v{t0}")
            a(f"v_mul_u32_u24 v{t1}, 43, v{t0}")
            a(f"v_lshrrev_b32 v{t1}, 7, v{t1}")
            a(f"v_add_u32 v{t1}, s27, v{t1}")
            a(f"v_and_b32 v{t2}, 7, v1")
            a(f"v_lshrrev_b32 v{t3}, 3, v1")
            a(f"v_lshlrev_b32 v{t3}, 7, v{t3}")
            a(f"v_add_u32 v{t3}, s26, v{t3}")
            a(f"v_bfe_u32 v{t4}, v{t1}, 1, 3")
            a(f"v_xor_b32 v{t4}, v{t4}, v{t2}")
            a(f"v_lshl_add_u32 v{self.vDK+i}, v{t4}, 4, v{t3}")
            if self.shape == 32:
                a(f"v_bfe_u32 v{t4}, v{t1}, 1, 1")
                a(f"v_lshlrev_b32 v{t4}, 2, v{t4}")
            else:
                a(f"v_bfe_u32 v{t4}, v{t1}, 1, 2")
                a(f"v_lshlrev_b32 v{t4}, 1, v{t4}")
            a(f"v_xor_b32 v{t4}, v{t4}, v{t2}")
            a(f"v_lshl_add_u32 v{self.vDV+i}, v{t4}, 4, v{t3}")
        a(f"s_add_u32 s{self.sM0K}, s26, {self.kbase}")
        a(f"s_add_u32 s{self.sM0V}, s26, {self.vbase}")
        if self.shape == 32:
            a(f"v_and_b32 v{t0}, 31, v1")
            a(f"v_lshrrev_b32 v{t1}, 5, v1")
            a(f"v_bfe_u32 v{t2}, v{t0}, 1, 3")
            a(f"v_mul_u32_u24 v{t3}, 384, v{t0}")
            if self.kbase: a(f"v_add_u32 v{t3}, {self.kbase}, v{t3}")
            for jj in range(4):
                a(f"v_or_b32 v{t4}, {2*jj}, v{t1}")
                a(f"v_xor_b32 v{t4}, v{t4}, v{t2}")
                a(f"v_lshl_add_u32 v{self.vKA+jj}, v{t4}, 4, v{t3}")
            a(f"v_lshrrev_b32 v{t0}, 5, v1")
            a(f"v_lshlrev_b32 v{t0}, 2, v{t0}")
            a(f"v_bfe_u32 v{t1}, v1, 2, 2")
            a(f"v_add_u32 v{t0}, v{t0}, v{t1}")
            a(f"v_mul_u32_u24 v{t0}, 384, v{t0}")
            a(f"v_and_b32 v{t1}, 1, v1")
            a(f"v_lshl_add_u32 v{t0}, v{t1}, 3, v{t0}")
            a(f"v_add_u32 v{t0}, {self.vbase}, v{t0}")
            a(f"v_bfe_u32 v{t1}, v1, 4, 1")
            a(f"v_lshlrev_b32 v{t1}, 1, v{t1}")
            a(f"v_bfe_u32 v{t2}, v1, 1, 1")
            a(f"v_or_b32 v{t1}, v{t1}, v{t2}")
            a(f"v_bfe_u32 v{t2}, v1, 3, 1")
            a(f"v_lshlrev_b32 v{t2}, 2, v{t2}")
            a(f"v_xor_b32 v{t1}, v{t1}, v{t2}")
            a(f"v_lshl_add_u32 v{self.vVA}, v{t1}, 4, v{t0}")
            a(f"v_xor_b32 v{t1}, 4, v{t1}")
            a(f"v_lshl_add_u32 v{self.vVA+1}, v{t1}, 4, v{t0}")
        else:
            a(f"v_and_b32 v{t0}, 15, v1")
            a(f"v_lshrrev_b32 v{t1}, 4, v1")
            a(f"v_bfe_u32 v{t2}, v{t0}, 1, 3")
            a(f"v_mul_u32_u24 v{t3}, 384, v{t0}")
            if self.kbase: a(f"v_add_u32 v{t3}, {self.kbase}, v{t3}")
            for jj in range(2):
                a(f"v_or_b32 v{t4}, {4*jj}, v{t1}")
                a(f"v_xor_b32 v{t4}, v{t4}, v{t2}")
                a(f"v_lshl_add_u32 v{self.vKA+jj}, v{t4}, 4, v{t3}")
            a(f"v_lshrrev_b32 v{t0}, 2, v1")
            a(f"v_bfe_u32 v{t2}, v{t0}, 1, 2")
            a(f"v_lshlrev_b32 v{t2}, 1, v{t2}")
            a(f"v_mul_u32_u24 v{t0}, 384, v{t0}")
            a(f"v_and_b32 v{t1}, 1, v1")
            a(f"v_lshl_add_u32 v{t0}, v{t1}, 3, v{t0}")
            a(f"v_add_u32 v{t0}, {self.vbase}, v{t0}")
            a(f"v_bfe_u32 v{t1}, v1, 1, 1")
            for dd in range(4):
                a(f"v_or_b32 v{t4}, {2*dd}, v{t1}")
                a(f"v_xor_b32 v{t4}, v{t4}, v{t2}")
                a(f"v_lshl_add_u32 v{self.vVA+dd}, v{t4}, 4, v{t0}")
        return L("\n".join(s))

    def dma(self, which, slot, tag):
        srd, so, m, vd = ((self.sK, self.sOffK, self.sM0K, self.vDK) if which == 'K' else (self.sV, self.sOffV, self.sM0V, self.vDV))
        out = [I(f"s_add_u32 m0, s{m}, {slot*KSLOT}")]
        for i in range(3):
            out.append(I(f"buffer_load_dwordx4 v{vd+i}, s[{srd}:{srd+3}], s{so} offen offset:{1024*i} lds", tag))
        out.append(I(f"s_add_u32 s{so}, s{so}, {KSLOT}"))
        return out

    def frag_reads(self, u, t, U):
        r = self.ring_reg(U); tag = ('F', U); slot = t % 4
        if self.nolds and t > 0: return [I("")]
        if u < 12:
            if self.shape == 32:
                return [I(f"ds_read_b128 {R('v', r, 4)}, v{self.vKA + (u & 3)} offset:{slot*KSLOT + 128*(u >> 2)}", tag)]
            kt, j = u // 6, u % 6
            return [I(f"ds_read_b128 {R('v', r, 4)}, v{self.vKA + (j & 1)} offset:{slot*KSLOT + 6144*kt + 128*(j >> 1)}", tag)]
        f = u - 12
        if self.shape == 32:
            s, dt = f // 6, f % 6
            return [I(f"ds_read_b64_tr_b16 {R('v', r + 2*tt, 2)}, v{self.vVA + (dt & 1)} offset:{slot*KSLOT + 384*(16*s + 8*tt) + 128*(dt >> 1)}", tag) for tt in range(2)]
        return [I(f"ds_read_b64_tr_b16 {R('v', r + 2*tt, 2)}, v{self.vVA + (f & 3)} offset:{slot*KSLOT + 6144*tt + 128*(f >> 2)}", tag) for tt in range(2)]

    def frag_mfmas(self, u, t, U, first_c=None):
        r = R('v', self.ring_reg(U), 4); X = self.vS[t & 1]; out = []
        if self.static_p and u >= 12: X = self.vS[0]
        if self.static_p and u < 12: X = self.vS[1] if t > 0 else self.vS[0]
        for qt in range(self.nq):
            if u < 12:
                if self.shape == 32:
                    d = R('v', X + 16 * qt, 16); c = d if u else (first_c or R('v', self.vNeg + 16 * qt, 16))
                    out.append(I(f"v_mfma_f32_32x32x16_bf16 {d}, {r}, {self.Qf(qt, u)}, {c}"))
                else:
                    kt, j = u // 6, u % 6
                    d = R('v', X + 8 * qt + 4 * kt, 4); c = d if j else (first_c or R('v', self.vNeg + 4 * qt, 4))
                    out.append(I(f"v_mfma_f32_16x16x32_bf16 {d}, {r}, {self.Qf(qt, j)}, {c}"))
            else:
                f = u - 12
                if self.shape == 32:
                    s, dt = f // 6, f % 6
                    o = R('a', self.Oa(qt, dt), 16)
                    out.append(I(f"v_mfma_f32_32x32x16_bf16 {o}, {r}, {R('v', X + 16*qt + 8*s, 4)}, {o}"))
                else:
                    o = R('a', self.Oa(qt, f), 4)
                    out.append(I(f"v_mfma_f32_16x16x32_bf16 {o}, {r}, {R('v', X + 8*qt, 4)}, {o}"))
        return out

    def softmax(self, t):
        X = self.vS[t & 1]; groups = []
        if self.shape == 32:
            order = [(qt, s) for s in range(2) for qt in range(2)]
            for qt, s in order:
                b = X + 16 * qt + 8 * s
                for e in range(4): groups.append((qt, b + 2 * e, b + e))
        else:
            for half in range(2):
                for qt in range(4):
                    b = X + 8 * qt
                    for e in (2 * half, 2 * half + 1): groups.append((qt, b + 2 * e, b + e))
        ex = []; post = []
        for qt, a, d in groups:
            ex.append([I(f"v_exp_f32 v{a}, v{a}"), I(f"v_exp_f32 v{a+1}, v{a+1}")])
            post.append([I(f"v_add_f32 v{self.vL+qt}, v{self.vL+qt}, v{a}"), I(f"v_add_f32 v{self.vL+qt}, v{self.vL+qt}, v{a+1}"),
                         I(f"v_cvt_pk_bf16_f32 v{d}, v{a}, v{a+1}")])
        return ex, post

    def softmax_linear(self, t):
        ex, post = self.softmax(t); out = []
        n = len(ex)
        for k in range(n + 1):
            if k < n: out += ex[k]
            if k > 0: out += post[k - 1]
        return out

COST = {'trans': 8, 'valu': 4, 'ds': 4, 'vmem': 4, 'salu': 4, 'wait': 4, 'ctl': 4, 'nop': 4, 'label': 0}

def cost(items): return sum(COST[i.kind] for i in items)

def plan_softmax(A, t, gaps, post):
    ex, po = A.softmax(t)
    E = [i for g in ex for i in g]
    P = [(k, i) for k, g in enumerate(po) for i in g]
    used = {g: cost(post.get(g, [])) + A.pre_cost.get(g, 0) for g in gaps}
    for boost in range(0, 64, 4):
        plan = []; ne = 0; pp = 0
        free = [A.cap + boost - used[g] for g in gaps]
        tf = sum(max(0, f) for f in free); cum = 0
        for gi, g in enumerate(gaps):
            f = free[gi]; cum += max(0, f); frac = cum / tf
            items = []; lastE = None
            def ready(): return pp < len(P) and ne >= 2 * (P[pp][0] + 1) and lastE != P[pp][0]
            while True:
                wantE = ne < len(E) and f >= 8 and (ne < frac * len(E) - 1e-9) and (pp >= len(P) or ne // 2 - P[pp][0] < 3)
                wantP = ready() and f >= 4 and (pp < frac * len(P) + 2)
                if wantE and not (items and items[-1].kind == 'trans' and wantP):
                    items.append(E[ne]); lastE = ne // 2; ne += 1; f -= 8
                elif wantP:
                    items.append(P[pp][1]); pp += 1; f -= 4; lastE = None
                else: break
            plan.append(items)
        if ne == len(E) and pp == len(P):
            allv = E + [p[1] for p in P]
            idx = {id(v): k for k, v in enumerate(allv)}
            return boost, [[idx[id(i)] for i in items] for items in plan]
    raise RuntimeError("softmax does not fit")

def build_main(A, ntiles=64, extra_vm=None, dma=True, barrier=True, softmax=True, first_hook=None):
    per, ng = A.per, A.ng
    mf = {}; pre = {}; post = {}
    def add(d, g, items): d.setdefault(g, []).extend(items)
    G = lambda t, g: t * ng + g
    for t in range(-1, ntiles):
        for u in range(24):
            tt = t + 1 if u < 12 else t
            if tt < 0 or tt >= ntiles: continue
            U = (t + 1) * 24 + u
            g0 = G(t, u * per)
            ms = A.frag_mfmas(u, tt, U, first_c='0' if (u < 12 and tt == 0) else None)
            for k, m in enumerate(ms): mf[g0 + k] = m
            rd = A.frag_reads(u, tt, U)
            gr = g0 - A.dist
            add(post, gr - 1, rd[:1])
            if len(rd) > 1: add(post, gr, rd[1:])
            if not A.wait_pair: add(pre, g0, [W(lgkm=[('F', U)])])
            elif u % 2 == 0: add(pre, g0, [W(lgkm=[('F', U), ('F', U + 1)])])
    for t in range(-1, ntiles):
        need = [('K', t + 2), ('V', t)] + ([('K', 0)] if t == -1 else [])
        if not dma and t == -1: need += [('K', 2), ('V', 0)]
        bl = [W(vm=need)] + ([I("s_barrier")] if barrier else [])
        gb = G(t, A.bar_gap) if t >= 0 else G(-1, 0) - A.dist - 2
        post[gb] = bl + post.get(gb, [])
        if dma:
            items = []
            if t + 4 < ntiles: items.append(A.dma('K', (t + 4) % 4, ('K', t + 4)))
            if t + 2 < ntiles: items.append(A.dma('V', (t + 2) % 4, ('V', t + 2)))
            g = G(t, A.bar_gap + A.dma_start)
            for grp in items:
                add(post, g - 1, [grp[0]])
                for k in range(3):
                    add(post, g, [grp[1 + k]]); g += A.dma_step
                add(post, g - A.dma_step + 1, [grp[4]])
    A.pre_cost = {g: cost(v) for g, v in pre.items()}
    start = A.sm_start if A.sm_start is not None else (26 if A.shape == 32 else 47)
    ln = A.sm_len if A.sm_len is not None else ng
    A.boosts = None
    if first_hook: add(post, G(-1, 12 * per - 1), first_hook())
    if A.static_p: add(post, G(-1, 12 * per - 1), A.softmax_linear(0))
    elif softmax:
        g0 = G(7, start)
        A.boosts, plan = plan_softmax(A, 8, list(range(g0, g0 + ln)), post)
        for t in range(0, ntiles):
            ex, po = A.softmax(t)
            allv = [i for g in ex for i in g] + [i for g in po for i in g]
            for k, idx in enumerate(plan): add(post, G(t - 1, start) + k, [allv[j] for j in idx])
    its = []
    for t in range(-1, ntiles):
        seq = []
        lo = G(t, 0) - (A.dist + 2 if t == -1 else 0)
        for g in range(lo, G(t + 1, 0)):
            seq += pre.get(g, [])
            if g in mf: seq.append(mf[g])
            seq += post.get(g, [])
        its.append(seq)
    return its

def gap_report(A, seq):
    out = []; cur = None
    for i in seq:
        if i.kind == 'mfma':
            if cur is not None: out.append(cur)
            cur = 0
        elif cur is not None and i.text: cur += COST[i.kind]
    out.append(cur)
    return out
```

```python
from asmlib import *
from attn import Attn, KSLOT, COST, cost, gap_report

class Attn16(Attn):
    def __init__(self, chain=True, summode='add', dmamod='', lat=8, w0=40, bar=2, single_off=True, dma_alone=True, nwait=1, **kw):
        kw.setdefault('ring', 12)
        super().__init__(shape=16, **kw)
        self.chain = chain; self.summode = summode; self.dmamod = dmamod; self.lat = lat; self.w0 = w0; self.bar = bar
        self.dma_alone = dma_alone; self.nwait = nwait
        p = self.vend
        if summode == 'pk': self.vL = (p + 1) // 2 * 2; p = self.vL + 8
        if summode == 'ones':
            self.vL = (p + 3) // 4 * 4; p = self.vL + 16
            self.vOnes = p; p += 4
        self.vend = p
        self.nL = {'add': 4, 'pk': 8, 'ones': 16}[summode]
        self.ng = 100 if summode == 'ones' else 96

    def dma(self, which, slot, tag):
        out = super().dma(which, slot, tag)
        if self.dmamod:
            for i in out[1:4]: i.text = i.text.replace(" lds", f" {self.dmamod} lds")
        return out

    def mfma_list(self, t):
        out = []
        X = self.vS[(t + 1) & 1]; Y = self.vS[t & 1]
        if self.static_p: X = self.vS[1] if t + 1 > 0 else self.vS[0]; Y = self.vS[0]
        for kt in range(2):
            order = [(qt, j) for qt in range(4) for j in range(6)] if self.chain else [(qt, j) for j in range(6) for qt in range(4)]
            for qt, j in order:
                u = 6 * kt + j
                d = R('v', X + 8 * qt + 4 * kt, 4)
                c = d if j else ('0' if t == -1 else R('v', self.vNeg + 4 * qt, 4))
                out.append((I(f"v_mfma_f32_16x16x32_bf16 {d}, {R('v', self.vRing + 4*(u % 12), 4)}, {self.Qf(qt, j)}, {c}"), u, 'qk'))
        for f in range(12):
            for qt in range(4):
                o = R('a', self.Oa(qt, f), 4)
                out.append((I(f"v_mfma_f32_16x16x32_bf16 {o}, {R('v', self.vRing + 4*(f % 12), 4)}, {R('v', Y + 8*qt, 4)}, {o}"), 12 + f, 'pv'))
            if self.summode == 'ones' and f in (2, 5, 8, 11):
                qt = (f - 2) // 3; o = R('v', self.vL + 4 * qt, 4)
                out.append((I(f"v_mfma_f32_16x16x32_bf16 {o}, {R('v', self.vOnes, 4)}, {R('v', Y + 8*qt, 4)}, {o}"), None, 'pv'))
        return out

    def softmax(self, t):
        X = self.vS[t & 1]; ex = []; post = []
        for half in range(2):
            for qt in range(4):
                b = X + 8 * qt
                for e in (2 * half, 2 * half + 1):
                    a, d = b + 2 * e, b + e
                    ex.append([I(f"v_exp_f32 v{a}, v{a}"), I(f"v_exp_f32 v{a+1}, v{a+1}")])
                    pl = []
                    if self.summode == 'add':
                        pl += [I(f"v_add_f32 v{self.vL+qt}, v{self.vL+qt}, v{a}"), I(f"v_add_f32 v{self.vL+qt}, v{self.vL+qt}, v{a+1}")]
                    elif self.summode == 'pk':
                        l = R('v', self.vL + 2 * qt, 2)
                        pl += [I(f"v_pk_add_f32 {l}, {l}, {R('v', a, 2)}")]
                    pl.append(I(f"v_cvt_pk_bf16_f32 v{d}, v{a}, v{a+1}"))
                    post.append(pl)
        return ex, post

def schedule16(A, verbose=False):
    ng = A.ng; cap = 8
    ml = A.mfma_list(5)
    first = {}; last = {}
    for g, (m, u, k) in enumerate(ml):
        if u is None: continue
        first.setdefault(u, g); last[u] = g
    used = [0] * ng
    plan = []
    def put(g, key, c, pre=False):
        used[(g - 1 if pre else g) % ng] += c
        plan.append((g, key, pre))
    groups = [range(0, 6), range(6, 12), range(12, 18), range(18, 24)]
    waits = []
    for gi, gr in enumerate(groups):
        gr = list(gr)
        n = A.nwait if gi >= 2 else 1
        step = len(gr) // n
        for k in range(n):
            sub = gr[k * step:(k + 1) * step]
            waits.append((first[sub[0]], sub))
    for g, sub in waits: put(g, ('wait', tuple(sub)), 4, pre=True)
    put(A.bar, ('bar',), 8)
    waitof = {u: g for g, sub in waits for u in sub}
    jobs = []
    for u in range(24):
        prev = (u + 12) % 24
        free = last[prev] - (ng if prev > u else 0)
        dl = waitof[u] - A.lat
        jobs.append((u, free, dl))
    def fit(lo, hi, c, pref_partial):
        best = None
        rng = range(hi, lo - 1, -1)
        if pref_partial:
            for g in rng:
                if used[g % ng] and used[g % ng] + c <= cap: return g
        for g in rng:
            if used[g % ng] + c <= cap: return g
        return None
    prev_g = {}
    for grp in (3, 2, 1, 0):
        us = list(groups[grp]); hi_lim = 10 ** 9
        if grp >= 2:
            for u in reversed(us):
                _, lo, dl = jobs[u]
                g = fit(lo, min(dl, hi_lim), 8, False)
                assert g is not None, f"no slot for V frag {u}"
                put(g, ('rd', u, None), 8); hi_lim = g - 2
        else:
            for k in range(len(us) - 2, -1, -2):
                u0, u1 = us[k], us[k + 1]
                lo = max(jobs[u0][1], jobs[u1][1]); dl = min(jobs[u0][2], jobs[u1][2])
                g = fit(lo, min(dl, hi_lim), 8, False)
                assert g is not None, f"no slot for K frag {u0}"
                put(g, ('rd', u0, None), 4); put(g, ('rd', u1, None), 4); hi_lim = g - 2
    g = A.bar + 1
    def nxt(g, c, alone=False):
        while used[g % ng] + c > cap or (alone and used[g % ng]): g += 1
        return g
    for w in ('K', 'V'):
        g0 = nxt(g, 4); put(g0, ('dma', w, 0), 4); g = g0 + 1
        for k in range(1, 4):
            g = nxt(g, 4, A.dma_alone); put(g, ('dma', w, k), 8 if A.dma_alone else 4); g += 3
        g1 = nxt(g - 2, 4); put(g1, ('dma', w, 4), 4)
    ex, po = A.softmax(6)
    nE = 32; P = [(k, j) for k, gl in enumerate(po) for j in range(len(gl))]
    X0 = {}
    avail = []
    for k in range(16):
        kt, qt = k // 8, (k % 8) // 2
        if A.chain: a = 24 * kt + 6 * qt + 5
        else: a = 24 * kt + 20 + qt
        avail.append(a + 5)
    w0 = A.w0
    tot_free = sum(max(0, cap - u) for u in used)
    need = nE * 8 + len(P) * 4
    ne = 0; pp = 0; cum = 0; over = 0
    egap = {}
    for g in range(w0, w0 + ng):
        f = cap - used[g % ng]; cum += max(0, f)
        frac = min(1.0, cum / (tot_free - 8))
        def ready(): return pp < len(P) and ne >= 2 * (P[pp][0] + 1) and egap[P[pp][0]] < g
        canE = ne < nE and avail[ne // 2] <= g
        backlog = (ne // 2 - P[pp][0]) if pp < len(P) else 0
        if f >= 8 and canE and (ne < frac * nE + 0.5 or not ready()) and backlog < 3:
            put(g, ('sm', ne), 8); egap[ne // 2] = g; ne += 1
        else:
            while f >= 4 and ready() and (pp < frac * len(P) + 3):
                put(g, ('sm', 32 + pp), 4); pp += 1; f -= 4
    g = w0 + ng - 1
    assert ne == nE, f"exps left {nE - ne}"
    left = len(P) - pp
    while pp < len(P):
        put(g, ('sm', 32 + pp), 4); pp += 1
    if verbose: print("used", used, "left", left)
    A.used = used; A.left = left
    return plan

def build_main16(A, ntiles=64, dma=True, barrier=True, softmax=True, first_hook=None, pre_vm=None):
    ng = A.ng
    plan = schedule16(A)
    mf = {}; pre = {}; post = {}
    add = lambda d, g, items: d.setdefault(g, []).extend(items)
    G = lambda t, g: t * ng + g
    gmin = G(-1, 0) - 40
    sm = {}
    for t in range(0, ntiles):
        ex, po = A.softmax(t)
        sm[t] = [i for g in ex for i in g] + [i for g in po for i in g]
    dm = {}
    for t in range(-2, ntiles + 1):
        if t >= -1:
            for w, tile in (('K', t + 4), ('V', t + 2)):
                if tile < ntiles and dma: dm[(t, w)] = A.dma(w, tile % 4, (w, tile))
    if first_hook: add(post, G(-1, 47), first_hook())
    if A.static_p: add(post, G(-1, 47), A.softmax_linear(0))
    for t in range(-1, ntiles):
        for g, (m, u, k) in enumerate(A.mfma_list(t)):
            tile = t + 1 if k == 'qk' else t
            if 0 <= tile < ntiles: mf[G(t, g)] = m
        for g, key, ispre in plan:
            d = pre if ispre else post
            if key[0] in ('wait', 'rd'):
                us = key[1] if key[0] == 'wait' else (key[1],)
                tile = t + 1 if us[0] < 12 else t
                if not (0 <= tile < ntiles): continue
                if key[0] == 'wait': add(d, G(t, g), [W(lgkm=[('F', t, u) for u in us])])
                else:
                    if A.nolds and tile > 0: continue
                    rd = A.frag_reads(us[0], tile, us[0])
                    for i in rd: i.tag = ('F', t, us[0])
                    add(d, G(t, g), rd)
            elif key[0] == 'bar':
                need = [('K', t + 2), ('V', t)] + ([('K', 0)] if t == -1 else [])
                if not dma and t == -1: need += [('K', 2), ('V', 0)]
                bl = [W(vm=need)] + ([I("s_barrier")] if barrier else [])
                gb = G(t, g) if t >= 0 else gmin
                post[gb] = bl + post.get(gb, [])
            elif key[0] == 'dma':
                if (t, key[1]) in dm: add(d, G(t, g), [dm[(t, key[1])][key[2]]])
            elif key[0] == 'sm':
                if softmax and not A.static_p and t + 1 < ntiles:
                    gg = G(t, g)
                    if t == -1 and g < 47: gg = G(-1, 47)
                    add(d, gg, [sm[t + 1][key[1]]])
    its = []
    for t in range(-1, ntiles):
        seq = []
        lo = gmin if t == -1 else G(t, 0)
        for g in range(lo, G(t + 1, 0)):
            seq += pre.get(g, [])
            if g in mf: seq.append(mf[g])
            seq += post.get(g, [])
        its.append(seq)
    return its
```

```python
import math
from asmlib import *
from k2 import XN_OFF, XN_SIZE, row_reduce
import struct
def f2u(x): return struct.unpack('<I', struct.pack('<f', x))[0]
CSC = 192 ** -0.5 * math.log2(math.e)

def gen_k1():
    s = f"""
s_cmp_ge_u32 s2, 128
s_cbranch_scc1 L_k1_end
s_load_dwordx2 s[4:5], s[0:1], 0
s_load_dwordx2 s[6:7], s[0:1], 80
v_and_b32 v1, 63, v0
v_lshrrev_b32 v2, 6, v0
v_and_b32 v3, 15, v1
v_lshrrev_b32 v4, 4, v1
s_lshl_b32 s3, s2, 4
v_add_u32 v5, s3, v3
v_mul_u32_u24 v5, 1280, v5
v_mul_u32_u24 v6, 320, v2
v_add_u32 v5, v5, v6
v_lshl_add_u32 v5, v4, 4, v5
s_waitcnt lgkmcnt(0)
s_mov_b32 s8, s4
s_mov_b32 s9, s5
s_mov_b32 s10, 2621440
s_mov_b32 s11, 0x00020000
s_add_u32 s12, s6, {XN_OFF}
s_addc_u32 s13, s7, 0
s_mov_b32 s14, {XN_SIZE}
s_mov_b32 s15, 0x00020000
"""
    a = []
    for i in range(5): a.append(f"buffer_load_dwordx4 v[{8+4*i}:{11+4*i}], v5, s[8:11], 0 offen offset:{64*i}")
    a += ["v_lshlrev_b32 v6, 4, v3", "v_lshl_add_u32 v7, v2, 2, v6",
          "s_mul_i32 s3, s2, 20480", "v_mul_u32_u24 v5, 5120, v2", "v_lshl_add_u32 v5, v1, 4, v5", "s_waitcnt vmcnt(0)"]
    for i in range(20):
        a += [f"v_lshlrev_b32 v{28+2*i}, 16, v{8+i}", f"v_and_b32 v{29+2*i}, 0xffff0000, v{8+i}"]
    a += [f"v_add_f32 v{70+k}, v{28+k}, v{32+k}" for k in range(4)]
    for i in range(8, 40): a.append(f"v_add_f32 v{70+i%4}, v{70+i%4}, v{28+i}")
    a += ["v_add_f32 v70, v70, v71", "v_add_f32 v72, v72, v73", "v_add_f32 v70, v70, v72"]
    a += row_reduce(70, 71, "v_add_f32")
    a += ["ds_write_b32 v7, v70", "s_waitcnt lgkmcnt(0)", "s_barrier", "ds_read_b128 v[72:75], v6", "s_waitcnt lgkmcnt(0)",
          "v_add_f32 v72, v72, v73", "v_add_f32 v74, v74, v75", "v_add_f32 v72, v72, v74",
          f"v_mul_f32 v76, {f2u(1/640):#x}, v72"]
    a += [f"v_mov_b32 v{70+k}, 0" for k in range(4)]
    for i in range(40):
        a += [f"v_sub_f32 v{80+i%4}, v{28+i}, v76", f"v_fmac_f32 v{70+i%4}, v{80+i%4}, v{80+i%4}"]
    a += ["v_add_f32 v70, v70, v71", "v_add_f32 v72, v72, v73", "v_add_f32 v70, v70, v72"]
    a += row_reduce(70, 71, "v_add_f32")
    a += ["ds_write_b32 v7, v70 offset:256", "s_waitcnt lgkmcnt(0)", "s_barrier", "ds_read_b128 v[72:75], v6 offset:256", "s_waitcnt lgkmcnt(0)",
          "v_add_f32 v72, v72, v73", "v_add_f32 v74, v74, v75", "v_add_f32 v72, v72, v74",
          f"v_mul_f32 v72, {f2u(1/640):#x}, v72",
          "v_cvt_pk_bf16_f32 v72, v72, v76", "v_and_b32 v76, 0xffff0000, v72", "v_lshlrev_b32 v72, 16, v72",
          f"v_add_f32 v72, {f2u(1e-5):#x}, v72", "v_cvt_pk_bf16_f32 v72, v72, v72", "v_lshlrev_b32 v72, 16, v72",
          "v_sqrt_f32 v72, v72", "s_nop 0", "v_cvt_pk_bf16_f32 v72, v72, v72", "v_lshlrev_b32 v72, 16, v72",
          "v_rcp_f32 v72, v72", "s_nop 0", f"v_mul_f32 v77, {f2u(CSC):#x}, v72"]
    for i in range(20):
        x0, x1 = 28 + 2 * i, 29 + 2 * i
        a += [f"v_sub_f32 v{x0}, v{x0}, v76", f"v_sub_f32 v{x1}, v{x1}, v76", f"v_cvt_pk_bf16_f32 v{8+i}, v{x0}, v{x1}",
              f"v_lshlrev_b32 v{x0}, 16, v{8+i}", f"v_and_b32 v{x1}, 0xffff0000, v{8+i}",
              f"v_mul_f32 v{x0}, v{x0}, v77", f"v_mul_f32 v{x1}, v{x1}, v77", f"v_cvt_pk_bf16_f32 v{8+i}, v{x0}, v{x1}"]
        if i % 4 == 3:
            k = i // 4
            if k == 4: a.append("s_add_u32 s3, s3, 4096")
            a.append(f"buffer_store_dwordx4 v[{8+4*k}:{11+4*k}], v5, s[12:15], s3 offen offset:{1024*(k%4)}")
    a += ["L_k1_end:", "s_endpgm"]
    seq = L(s) + L("\n".join(a))
    fix_hazards([seq])
    for m in check_hazards(seq): print(m)
    return text(seq)
```

```python
import math
from asmlib import *
from attn import KSLOT, COST, cost, gap_report
from attn16 import Attn16, schedule16

XN_OFF = 0
OF_OFF = 0x400000
HF_OFF = 0x2000000
XN_SIZE = 128 * 20 * 1024
OF_SIZE = 128 * 192 * 1024
HF_SIZE = 128 * 48 * 1024
WBASE = 61440
WPAIR = 33792
FLAG_LDS = 163840 - 64
LTHR = 0x53800000

class K2(Attn16):
    def __init__(self, **kw):
        super().__init__(**kw)
        self.vKA = 2; self.vVA = 4; self.vDK = 8; self.vDV = 11; self.vL = 14; self.vT = 18
        self.vWA = 26; self.vWB = 28; self.vW1 = 30; self.vW1B = 31; self.vDW = 32; self.vDW1 = 35; self.vXB = 36
        self.vAr = 40; self.vAcc = 64
        self.vQ = 64; self.vS = [96, 128]; self.vNeg = 160; self.vRing = 176
        self.aB = 192; self.aH = 144
        assert self.summode == 'add'

sWQO, sW1O, sBO, sSlotR, sSlotD, sP, sM0W, sBad, sSlow, sQT = 44, 45, 46, 47, 48, 49, 50, 51, 52, 53

def k2_setup(A):
    s = f"""
s_load_dwordx4 s[4:7], s[0:1], 8
s_load_dwordx2 s[26:27], s[0:1], 24
s_load_dwordx2 s[38:39], s[0:1], 48
s_load_dwordx2 s[56:57], s[0:1], 80
s_and_b32 s36, s2, 7
s_lshr_b32 s37, s2, 3
s_lshl_b32 s36, s36, 2
s_lshr_b32 s3, s37, 3
s_add_u32 s36, s36, s3
s_and_b32 s37, s37, 7
s_mul_i32 s3, s36, 786432
s_mul_i32 s58, s36, 384
s_mul_i32 s59, s36, 96
s_waitcnt lgkmcnt(0)
s_add_u32 s8, s4, s3
s_addc_u32 s9, s5, 0
s_mov_b32 s10, 786432
s_mov_b32 s11, 0x00020000
s_add_u32 s12, s6, s3
s_addc_u32 s13, s7, 0
s_mov_b32 s14, 786432
s_mov_b32 s15, 0x00020000
s_add_u32 s28, s26, s58
s_addc_u32 s29, s27, 0
s_sub_u32 s30, {640*12288}, s58
s_mov_b32 s31, 0x00020000
s_add_u32 s32, s38, s59
s_addc_u32 s33, s39, 0
s_sub_u32 s34, {640*3072}, s59
s_mov_b32 s35, 0x00020000
s_mov_b32 s40, s56
s_mov_b32 s41, s57
s_mov_b32 s42, {HF_OFF + HF_SIZE}
s_mov_b32 s43, 0x00020000
s_mov_b32 s20, 0
s_mov_b32 s21, 0
s_mov_b32 s{sSlow}, 0
"""
    out = L(s)
    out += A.setup()
    T = A.vT; t0, t1, t2, t3, t4 = T, T + 1, T + 2, T + 3, T + 4
    s = [f"s_lshl_b32 s{sQT}, s37, 4", "s_lshl_b32 s3, s25, 2", f"s_add_u32 s{sQT}, s{sQT}, s3",
         f"s_mul_i32 s3, s{sQT}, 20480",
         "s_add_u32 s16, s56, s3", "s_addc_u32 s17, s57, 0", "s_mov_b32 s18, 81920", "s_mov_b32 s19, 0x00020000"]
    a = s.append
    for qt in range(4):
        a(f"v_lshlrev_b32 v{t0}, 4, v1")
        a(f"v_add_u32 v{A.vXB+qt}, {20480*qt}, v{t0}")
    for i in range(3):
        a(f"v_lshrrev_b32 v{t0}, 3, v1")
        a(f"v_add_u32 v{t0}, {8*i}, v{t0}")
        a(f"v_mul_u32_u24 v{t1}, 43, v{t0}")
        a(f"v_lshrrev_b32 v{t1}, 7, v{t1}")
        a(f"v_mul_u32_u24 v{t2}, 3, v{t1}")
        a(f"v_sub_u32 v{t2}, v{t0}, v{t2}")
        a(f"v_add_u32 v{t1}, s27, v{t1}")
        a(f"v_bfe_u32 v{t3}, v{t1}, 1, 1")
        a(f"v_lshlrev_b32 v{t3}, 2, v{t3}")
        a(f"v_and_b32 v{t4}, 7, v1")
        a(f"v_xor_b32 v{t3}, v{t3}, v{t4}")
        a(f"v_lshlrev_b32 v{t3}, 4, v{t3}")
        a(f"v_lshl_add_u32 v{t3}, v{t2}, 7, v{t3}")
        a(f"v_mul_u32_u24 v{t1}, 0x3000, v{t1}")
        a(f"v_add_u32 v{t3}, v{t3}, v{t1}")
        a(f"v_subrev_u32 v{A.vDW+i}, {1024*i}, v{t3}")
    a(f"v_mul_u32_u24 v{t0}, 43, v1")
    a(f"v_lshrrev_b32 v{t0}, 8, v{t0}")
    a(f"v_mul_u32_u24 v{t1}, 6, v{t0}")
    a(f"v_sub_u32 v{t1}, v1, v{t1}")
    a(f"v_add_u32 v{t0}, s27, v{t0}")
    a(f"v_mul_u32_u24 v{t0}, 0xc00, v{t0}")
    a(f"v_lshl_add_u32 v{t0}, v{t1}, 4, v{t0}")
    a(f"v_mov_b32 v{t1}, 0x40000000")
    a(f"v_cmp_gt_u32 vcc, 48, v1")
    a("s_nop 1")
    a(f"v_cndmask_b32 v{A.vDW1}, v{t1}, v{t0}, vcc")
    a(f"v_lshrrev_b32 v{t0}, 4, v1")
    a(f"v_lshlrev_b32 v{t0}, 3, v{t0}")
    a(f"v_bfe_u32 v{t1}, v1, 2, 2")
    a(f"v_add_u32 v{t0}, v{t0}, v{t1}")
    a(f"v_mul_u32_u24 v{t0}, 384, v{t0}")
    a(f"v_add_u32 v{t0}, {WBASE}, v{t0}")
    a(f"v_bfe_u32 v{t1}, v1, 3, 1")
    a(f"v_lshlrev_b32 v{t1}, 2, v{t1}")
    a(f"v_and_b32 v{t2}, 3, v1")
    a(f"v_xor_b32 v{t1}, v{t1}, v{t2}")
    a(f"v_lshl_add_u32 v{A.vWB}, v{t1}, 4, v{t0}")
    a(f"v_xor_b32 v{t1}, 4, v{t1}")
    a(f"v_lshl_add_u32 v{A.vWB+1}, v{t1}, 4, v{t0}")
    a(f"v_lshrrev_b32 v{t0}, 4, v1")
    a(f"v_mul_u32_u24 v{t0}, 1152, v{t0}")
    a(f"v_bfe_u32 v{t1}, v1, 2, 2")
    a(f"v_mul_u32_u24 v{t1}, 96, v{t1}")
    a(f"v_add_u32 v{t0}, v{t0}, v{t1}")
    a(f"v_lshl_add_u32 v{t0}, v{t2}, 3, v{t0}")
    a(f"v_add_u32 v{A.vW1B}, {WBASE + 24576}, v{t0}")
    a(f"v_mov_b32 v{A.vWA}, v{A.vWB}")
    a(f"v_mov_b32 v{A.vWA+1}, v{A.vWB+1}")
    a(f"v_mov_b32 v{A.vW1}, v{A.vW1B}")
    a(f"s_mov_b32 s{sWQO}, 0"); a(f"s_mov_b32 s{sW1O}, 0"); a(f"s_mov_b32 s{sBO}, 0")
    a(f"s_mov_b32 s{sSlotR}, 0"); a(f"s_mov_b32 s{sSlotD}, 0"); a(f"s_mov_b32 s{sP}, 0")
    a(f"s_mul_i32 s{sM0W}, s25, 1152")
    a(f"s_add_u32 s{sM0W}, s{sM0W}, {WBASE + 24576}")
    a(f"s_add_u32 s26, s26, {WBASE}")
    return out + L("\n".join(s))

def w_dma(A, p):
    tag = ('W', p); out = []
    for kk in range(2):
        g = [I(f"s_add_u32 m0, s26, s{sSlotD}") if kk == 0 else I(f"s_add_u32 m0, m0, 12288")]
        for i in range(3):
            g.append(I(f"buffer_load_dwordx4 v{A.vDW+i}, s[28:31], s{sWQO} offen offset:{1024*i} lds", tag))
        g.append(I(f"s_add_u32 s{sWQO}, s{sWQO}, 393216"))
        out.append(g)
    for kk in range(2):
        g = [I(f"s_add_u32 m0, s{sM0W}, s{sSlotD}") if kk == 0 else I(f"s_add_u32 m0, m0, 4608")]
        g.append(I(f"buffer_load_dwordx4 v{A.vDW1}, s[32:35], s{sW1O} offen lds", tag))
        g.append(I(f"s_add_u32 s{sW1O}, s{sW1O}, 98304"))
        out.append(g)
    out.append(L(f"s_add_u32 s{sSlotD}, s{sSlotD}, {WPAIR}\ns_cmp_eq_u32 s{sSlotD}, {3*WPAIR}\ns_cselect_b32 s{sSlotD}, 0, s{sSlotD}"))
    return out

def b_reg(A, p, qt, kk): return A.aB + 32 * (p & 1) + 8 * qt + 4 * kk
def b_load(A, p, qt, kk):
    return I(f"buffer_load_dwordx4 {R('a', b_reg(A, p, qt, kk), 4)}, v{A.vXB+qt}, s[16:19], s{sBO} offen offset:{1024*kk}", ('B', p))
def b_adv():
    return L(f"s_add_u32 s{sBO}, s{sBO}, 2048\ns_cmp_ge_u32 s{sBO}, 20480\ns_cselect_b32 s{sBO}, 81920, s{sBO}")

def a_reads(A, p, c):
    r0 = A.vAr + 8 * (c % 3); out = []
    for kk in range(2):
        for tt in range(2):
            if c < 12:
                j, u = c >> 1, c & 1
                ad = A.vWA + (j & 1); off = 12288 * kk + 1536 * tt + 128 * (j >> 1) + 8 * u
            else:
                ad = A.vW1; off = 4608 * kk + 384 * tt + 32 * (c - 12)
            out.append(I(f"ds_read_b64_tr_b16 {R('v', r0 + 4*kk + 2*tt, 2)}, v{ad} offset:{off}", ('A', p, c)))
    return out

def slot_adv(A):
    return L(f"""s_add_u32 s{sSlotR}, s{sSlotR}, {WPAIR}
s_cmp_eq_u32 s{sSlotR}, {3*WPAIR}
s_cselect_b32 s{sSlotR}, 0, s{sSlotR}
v_add_u32 v{A.vWA}, s{sSlotR}, v{A.vWB}
v_add_u32 v{A.vWA+1}, s{sSlotR}, v{A.vWB+1}
v_add_u32 v{A.vW1}, s{sSlotR}, v{A.vW1B}""")

def acc_reg(A, c, qt):
    if c < 12: return R('v', A.vAcc + 8 * (6 * qt + (c >> 1)) + 4 * (c & 1), 4)
    return R('a', A.aH + 16 * (c - 12) + 4 * qt, 4)

def gemm_step(A, p):
    pre = {}; post = {}; mf = []
    add = lambda d, g, it: d.setdefault(g, []).extend(it)
    for c in range(15):
        for qt in range(4):
            for kk in range(2):
                d = acc_reg(A, c, qt)
                mf.append(I(f"v_mfma_f32_16x16x32_bf16 {d}, {R('v', A.vAr + 8*(c % 3) + 4*kk, 4)}, {R('a', b_reg(A, p, qt, kk), 4)}, {d}"))
        add(pre, 8 * c, [W(lgkm=[('A', p, c)], vm=[('B', p)] if c == 0 else None)])
        rd = a_reads(A, p, c + 2) if c < 13 else a_reads(A, p + 1, c - 13)
        g = 8 * c + (1 if c == 13 else 0)
        add(post, g, rd[:2]); add(post, g + 2, rd[2:])
    sa = slot_adv(A)
    add(post, 99, sa[:2]); add(post, 101, sa[2:4]); add(post, 102, sa[4:])
    add(post, 104, [W(lgkm=[('A', p, 14)], vm=[('W', p + 1)]), I("s_barrier")])
    for qt in range(4):
        for kk in range(2): add(post, 112 + 2 * qt + kk, [b_load(A, p + 2, qt, kk)])
    ba = b_adv()
    g = 1
    for grp in w_dma(A, p + 2):
        for it in grp:
            if it.kind == 'vmem':
                while g % 8 in (0, 2, 7): g += 1
                add(post, g, [it]); g += 2
            else:
                while g % 8 in (0, 2): g += 1
                add(post, g, [it]); g += 1
    add(post, 91, ba[:2]); add(post, 93, ba[2:])
    seq = []
    for g in range(120):
        seq += pre.get(g, []); seq.append(mf[g]); seq += post.get(g, [])
    return seq

def q_convert(A):
    s = []
    for f in range(24):
        b = A.vAcc + 8 * f
        for e in range(4):
            d = (b + e) if f < 16 else (A.vQ + 4 * (f - 16) + e)
            s.append(f"v_cvt_pk_bf16_f32 v{d}, v{b+2*e}, v{b+2*e+1}")
        if f < 16:
            for e in range(4): s.append(f"v_accvgpr_write_b32 a{192+4*f+e}, v{b+e}")
    return L("\n".join(s))

def h_store(A):
    T = A.vT; out = []
    out += L(f"v_lshlrev_b32 v{T+6}, 4, v1\ns_mul_i32 s3, s36, 3\ns_mul_i32 s54, s{sQT}, {48*1024}\ns_add_u32 s54, s54, {HF_OFF}")
    for c in range(3):
        out += L(f"s_add_u32 s38, s3, {c}\ns_and_b32 s39, s38, 1\ns_lshl_b32 s39, s39, 3\ns_lshr_b32 s38, s38, 1\ns_lshl_b32 s38, s38, 10\ns_add_u32 s38, s38, s39\ns_add_u32 s38, s38, s54")
        for qt in range(4):
            a = A.aH + 16 * c + 4 * qt
            t = A.vAr + 8 * (qt & 1)
            out += L("\n".join([f"v_accvgpr_read_b32 v{t+e}, a{a+e}" for e in range(4)] +
                               [f"v_cvt_pk_bf16_f32 v{t+4}, v{t}, v{t+1}", f"v_cvt_pk_bf16_f32 v{t+5}, v{t+2}, v{t+3}",
                                f"v_pk_max_i16 v{t+4}, v{t+4}, 0", f"v_pk_max_i16 v{t+5}, v{t+5}, 0"] +
                               [f"v_accvgpr_write_b32 a{a+e}, 0" for e in range(4)]))
            out.append(I(f"buffer_store_dwordx2 {R('v', t+4, 2)}, v{T+6}, s[40:43], s38 offen", 'HS'))
            if qt < 3: out.append(I(f"s_add_u32 s38, s38, {48*1024}"))
    return out

def row_reduce(reg, tmp, op):
    return [f"v_mov_b32 v{tmp}, v{reg}", "s_nop 1", f"v_permlane16_swap_b32 v{reg}, v{tmp}", f"{op} v{reg}, v{reg}, v{tmp}",
            f"v_mov_b32 v{tmp}, v{reg}", "s_nop 1", f"v_permlane32_swap_b32 v{reg}, v{tmp}", f"{op} v{reg}, v{reg}, v{tmp}"]

def first_max(A):
    X = A.vS[0]; T = A.vT; s = ["s_nop 7"]
    for qt in range(4):
        b = X + 8 * qt; m = T + qt
        s += [f"v_max3_f32 v{m}, v{b}, v{b+1}, v{b+2}", f"v_max3_f32 v{m}, v{m}, v{b+3}, v{b+4}",
              f"v_max3_f32 v{m}, v{m}, v{b+5}, v{b+6}", f"v_max_f32 v{m}, v{m}, v{b+7}"]
    for qt in range(4): s += row_reduce(T + qt, T + 4, "v_max_f32")
    for qt in range(4):
        b = X + 8 * qt; m = T + qt
        for k in range(8): s.append(f"v_sub_f32 v{b+k}, v{b+k}, v{m}")
        for k in range(4): s.append(f"v_sub_f32 v{A.vNeg+4*qt+k}, 0, v{m}")
    return L("\n".join(s))

def build_attn(A, ntiles=64):
    ng = A.ng
    plan = schedule16(A)
    mf = {}; pre = {}; post = {}
    add = lambda d, g, items: d.setdefault(g, []).extend(items)
    G = lambda t, g: t * ng + g
    gmin = G(-1, 0) - 40
    last = ntiles - 1
    sm = {}
    for t in range(0, ntiles):
        ex, po = A.softmax(t); sm[t] = [i for g in ex for i in g] + [i for g in po for i in g]
    dm = {}
    for t in range(-1, last):
        for w, tile in (('K', t + 4), ('V', t + 2)): dm[(t, w)] = A.dma(w, tile % 4, (w, tile))
    add(post, G(-1, 47), first_max(A))
    for t in range(-1, ntiles):
        for g, (m, u, k) in enumerate(A.mfma_list(t)):
            tile = t + 1 if k == 'qk' else t
            if 0 <= tile < ntiles: mf[G(t, g)] = m
        for g, key, ispre in plan:
            d = pre if ispre else post
            if key[0] in ('wait', 'rd'):
                us = key[1] if key[0] == 'wait' else (key[1],)
                tile = t + 1 if us[0] < 12 else t
                if tile < 0: continue
                if tile >= ntiles and (key[0] == 'wait' or g >= 0): continue
                if key[0] == 'wait': add(d, G(t, g), [W(lgkm=[('F', t, u) for u in us])])
                else:
                    rd = A.frag_reads(us[0], tile, us[0])
                    for i in rd: i.tag = ('F', t, us[0])
                    add(d, G(t, g), rd)
            elif key[0] == 'bar':
                need = [('K', t + 2), ('V', t)] + ([('K', 0), ('W', 11)] if t == -1 else [])
                gb = G(t, g) if t >= 0 else gmin
                post[gb] = [W(vm=need), I("s_barrier")] + post.get(gb, [])
            elif key[0] == 'dma':
                if (t, key[1]) in dm: add(d, G(t, g), [dm[(t, key[1])][key[2]]])
            elif key[0] == 'sm':
                if t + 1 < ntiles:
                    gg = G(t, g)
                    if t == -1 and g < 47: gg = G(-1, 47)
                    add(d, gg, [sm[t + 1][key[1]]])
    its = []
    for t in range(-1, ntiles):
        seq = []
        for g in range(gmin if t == -1 else G(t, 0), G(t + 1, 0)):
            seq += pre.get(g, [])
            if g in mf: seq.append(mf[g])
            seq += post.get(g, [])
        its.append(seq)
    return its

def epilogue(A):
    T = A.vT; s = ["s_nop 7"]
    for qt in range(4): s += row_reduce(A.vL + qt, T + 4, "v_add_f32")
    s += [f"s_mov_b32 s3, {LTHR:#x}", f"s_mov_b64 s[54:55], 0"]
    for qt in range(4):
        s += [f"v_cmp_ngt_f32 vcc, s3, v{A.vL+qt}", f"v_rcp_f32 v{T+qt}, v{A.vL+qt}", "s_or_b64 s[54:55], s[54:55], vcc"]
    s += [f"v_lshlrev_b32 v{T+6}, 4, v1", f"s_mul_i32 s38, s{sQT}, {192*1024}", "s_mul_i32 s39, s36, 6144",
          "s_add_u32 s38, s38, s39", f"s_add_u32 s38, s38, {OF_OFF}"]
    out = L("\n".join(s))
    n = 0
    for qt in range(4):
        for j in range(6):
            t = A.vS[0] + 12 * (n % 4); n += 1
            a = A.Oa(qt, 2 * j)
            s = [f"v_accvgpr_read_b32 v{t+e}, a{a+e}" for e in range(8)]
            s += [f"v_mul_f32 v{t+e}, v{t+e}, v{T+qt}" for e in range(8)]
            s += [f"v_cvt_pk_bf16_f32 v{t+8+e}, v{t+2*e}, v{t+2*e+1}" for e in range(4)]
            out += L("\n".join(s))
            off = 1024 * (j % 4)
            out.append(I(f"buffer_store_dwordx4 {R('v', t+8, 4)}, v{T+6}, s[40:43], s38 offen offset:{off}", 'OS'))
            if j == 3: out.append(I("s_add_u32 s38, s38, 4096"))
            if j == 5: out.append(I(f"s_add_u32 s38, s38, {192*1024 - 4096}"))
    out += L(f"""s_cmp_lg_u32 s{sSlow}, 0
s_cbranch_scc1 L_k2_end
s_cmp_lg_u64 s[54:55], 0
s_cselect_b32 s3, 1, 0
v_mov_b32 v{T}, s3
s_lshl_b32 s3, s25, 2
s_add_u32 s3, s3, {FLAG_LDS}
v_mov_b32 v{T+1}, s3
ds_write_b32 v{T+1}, v{T}
v_mov_b32 v{T+1}, {FLAG_LDS}
s_waitcnt lgkmcnt(0)
s_barrier
ds_read_b128 {R('v', T+2, 4)}, v{T+1}
s_waitcnt lgkmcnt(0)
v_or_b32 v{T+2}, v{T+2}, v{T+3}
v_or3_b32 v{T+2}, v{T+2}, v{T+4}, v{T+5}
s_nop 0
v_readfirstlane_b32 s3, v{T+2}
s_nop 0
s_cmp_eq_u32 s3, 0
s_cbranch_scc1 L_k2_end
s_branch L_k2_slow
L_k2_end:
s_endpgm""")
    return out

def slow_path(A):
    T = A.vT; X = A.vS[0]; M = A.vNeg; AL = A.vNeg + 4; TM = A.vNeg + 8
    s = ["L_k2_slow:", f"s_mov_b32 s{sSlow}, 1", "s_mov_b32 s20, 0", "s_mov_b32 s21, 0", "s_mov_b32 s24, 64", "s_waitcnt vmcnt(0)"]
    s += [f"v_accvgpr_write_b32 a{i}, 0" for i in range(192)]
    for q in range(4): s += [f"v_mov_b32 v{A.vL+q}, 0", f"v_mov_b32 v{M+q}, 0xff7fffff"]
    s += ["L_k2_slow_loop:", "s_barrier"]
    out = L("\n".join(s))
    for w in ('K', 'V'):
        d = A.dma(w, 0, 'SL'); out += [d[0], I("s_nop 0")] + d[1:]
    out += L("s_waitcnt vmcnt(0)\ns_barrier")
    for kt in range(2):
        for j in range(6): out += A.frag_reads(6 * kt + j, 0, 6 * kt + j)
    out += L("s_waitcnt lgkmcnt(0)")
    for kt in range(2):
        for qt in range(4):
            for j in range(6):
                d = R('v', X + 8 * qt + 4 * kt, 4)
                out.append(I(f"v_mfma_f32_16x16x32_bf16 {d}, {R('v', A.vRing + 4*(6*kt+j), 4)}, {A.Qf(qt, j)}, {d if j else 0}"))
    out += L("s_nop 7")
    for f in range(12): out += A.frag_reads(12 + f, 0, 12 + f)
    s = []
    for qt in range(4):
        b = X + 8 * qt; m = TM + qt
        s += [f"v_max3_f32 v{m}, v{b}, v{b+1}, v{b+2}", f"v_max3_f32 v{m}, v{m}, v{b+3}, v{b+4}",
              f"v_max3_f32 v{m}, v{m}, v{b+5}, v{b+6}", f"v_max3_f32 v{m}, v{m}, v{b+7}, v{M+qt}"]
        s += row_reduce(m, T + 4, "v_max_f32")
        s += [f"v_sub_f32 v{AL+qt}, v{M+qt}, v{m}", f"v_exp_f32 v{AL+qt}, v{AL+qt}", f"v_mov_b32 v{M+qt}, v{m}"]
        for k in range(8): s += [f"v_sub_f32 v{b+k}, v{b+k}, v{m}"]
        for k in range(8): s += [f"v_exp_f32 v{b+k}, v{b+k}"]
        s += [f"v_mul_f32 v{A.vL+qt}, v{A.vL+qt}, v{AL+qt}"]
        for k in range(8): s += [f"v_add_f32 v{A.vL+qt}, v{A.vL+qt}, v{b+k}"]
        for e in range(4): s += [f"v_cvt_pk_bf16_f32 v{b+e}, v{b+2*e}, v{b+2*e+1}"]
        for i0 in range(0, 48, 4):
            a = 48 * qt + i0
            s += [f"v_accvgpr_read_b32 v{T+e}, a{a+e}" for e in range(4)]
            s += [f"v_mul_f32 v{T+e}, v{T+e}, v{AL+qt}" for e in range(4)]
            s += [f"v_accvgpr_write_b32 a{a+e}, v{T+e}" for e in range(4)]
    s += ["s_waitcnt lgkmcnt(0)", "s_nop 1"]
    out += L("\n".join(s))
    for f in range(12):
        for qt in range(4):
            o = R('a', A.Oa(qt, f), 4)
            out.append(I(f"v_mfma_f32_16x16x32_bf16 {o}, {R('v', A.vRing + 4*f, 4)}, {R('v', X + 8*qt, 4)}, {o}"))
    out += L("s_nop 7\ns_sub_u32 s24, s24, 1\ns_cmp_lg_u32 s24, 0\ns_cbranch_scc1 L_k2_slow_loop\ns_branch L_k2_epi")
    return out

def gen_k2(name, stamp=False, **kw):
    A = K2(**kw)
    pro = L("s_cmp_ge_u32 s2, 256\ns_cbranch_scc1 L_k2_end")
    if stamp: pro += L("s_memrealtime s[60:61]\ns_memtime s[62:63]")
    pro += k2_setup(A)
    for p in range(2):
        for grp in w_dma(A, p):
            pro += [grp[0], I("s_nop 0")] + grp[1:] if grp[1].kind == 'vmem' else grp
        pro += [b_load(A, p, qt, kk) for qt in range(4) for kk in range(2)] + (b_adv() if p == 0 else [])
    for tl, w in ((0, 'K'), (1, 'K'), (2, 'K'), (0, 'V')):
        d = A.dma(w, tl, (w, tl)); pro += [d[0], I("s_nop 0")] + d[1:]
    for i in range(192): pro.append(I(f"v_mov_b32 v{A.vAcc+i}, 0"))
    for i in range(192): pro.append(I(f"v_accvgpr_write_b32 a{i}, 0"))
    for q in range(4): pro.append(I(f"v_mov_b32 v{A.vL+q}, 0"))
    pro += [W(vm=[('W', 0)]), I("s_barrier")]
    if stamp: pro += L("s_memrealtime s[64:65]")
    pro += a_reads(A, 0, 0) + a_reads(A, 0, 1)
    steps = [gemm_step(A, p) for p in range(10)]
    mid = [W(vm=[('B', 11)])]
    if stamp: mid += L("s_memrealtime s[66:67]")
    mid += L("s_nop 7") + q_convert(A) + h_store(A)
    if stamp: mid += L("s_memrealtime s[68:69]\ns_waitcnt lgkmcnt(0)")
    its = build_attn(A)
    epi = epilogue(A)
    if stamp:
        k = [i for i, x in enumerate(epi) if x.text.startswith("L_k2_end")][0]
        epi[0:0] = L("s_memrealtime s[70:71]\ns_waitcnt lgkmcnt(0)")
        k += 2
        st = L(f"""s_waitcnt vmcnt(0)
s_memrealtime s[72:73]
s_memtime s[74:75]
s_load_dwordx2 s[76:77], s[0:1], 80
s_getreg_b32 s3, hwreg(HW_REG_XCC_ID)
s_waitcnt lgkmcnt(0)
s_add_u32 s76, s76, 0x4000000
s_addc_u32 s77, s77, 0
s_lshl_b32 s38, s2, 2
s_add_u32 s38, s38, s25
s_lshl_b32 s38, s38, 5
s_sub_u32 s74, s74, s62
v_mov_b32 v16, s60
v_mov_b32 v17, s64
v_mov_b32 v18, s66
v_mov_b32 v19, s68
v_mov_b32 v20, s70
v_mov_b32 v21, s72
v_mov_b32 v22, s74
v_mov_b32 v23, s3
v_mov_b32 v24, s38
global_store_dwordx4 v24, v[16:19], s[76:77]
global_store_dwordx4 v24, v[20:23], s[76:77] offset:16
s_waitcnt vmcnt(0)
s_endpgm""")
        epi = [x for x in epi]
        for x in epi:
            if x.text in ("s_cbranch_scc1 L_k2_end",): x.text = "s_cbranch_scc1 L_k2_stamp"
        epi += L("L_k2_stamp:") + st
    slow = slow_path(A)
    parts = [pro] + steps + [mid] + its + [epi]
    full = [i for p in parts for i in p]
    assign_waits(full)
    fix_hazards(parts)
    fix_hazards([slow])
    msgs = check_hazards([i for p in parts for i in p]) + check_hazards(slow + slow[200:])
    for m in msgs[:20]: print(m)
    ST = [text(s) for s in steps]
    for p in range(2, 8): assert ST[p] == ST[p + 2], f"gemm step {p} not periodic"
    for p in range(2): assert dominates(ST[p + 2], ST[p])
    T = [text(it) for it in its]
    for t in range(4, 59): assert T[t + 1] == T[t + 5], f"attention iteration {t} not periodic"
    for t in range(0, 4): assert dominates(T[t + 5], T[t + 1]), t
    out = text(pro) + "s_mov_b32 s24, 5\n.p2align 3\nL_k2_gemm:\n" + ST[2] + ST[3] + "s_sub_u32 s24, s24, 1\ns_cmp_lg_u32 s24, 0\ns_cbranch_scc1 L_k2_gemm\n"
    out += text(mid) + T[0] + "s_mov_b32 s24, 16\n.p2align 3\nL_k2_loop:\n" + T[5] + T[6] + T[7]
    out += "s_sub_u32 s24, s24, 1\ns_cmp_eq_u32 s24, 0\ns_cbranch_scc1 L_k2_tail\n" + T[8] + "s_branch L_k2_loop\nL_k2_tail:\n" + T[64]
    out += "L_k2_epi:\n" + text(epi) + text(slow)
    A.report = gap_report(A, its[3]); A.greport = gap_report(A, steps[3])
    return out, A
```

```python
from asmlib import *
from k2 import OF_OFF, OF_SIZE, HF_OFF, HF_SIZE
from k1 import f2u, CSC
from attn import gap_report

class K3:
    def __init__(self, D=6, dmamod='', bmod=''):
        self.D = D; self.dmamod = dmamod; self.bmod = bmod
        self.vDA = 2
        self.vRA = 7
        self.vB = 8
        self.vT = 16
        self.vX = 24
        self.vA = 36
        self.vR = 76
        self.aS = 0; self.aG = 80; self.aB = 160
        self.slot = 5120
def bregs(A, n, qt): return A.aB + 16 * (n % A.D) + 4 * qt
def fetch_dma(A, n):
    sl = (n % A.D) * A.slot; m = (' ' + A.dmamod) if A.dmamod else ''
    out = [I(f"s_add_u32 m0, s22, {sl}")]
    for i in range(4): out.append(I(f"buffer_load_dwordx4 v{A.vDA+i}, s[8:11], s20 offen offset:{1024*i}{m} lds", ('A', n)))
    out.append(I(f"s_add_u32 m0, s22, {sl + 4096}"))
    out.append(I(f"buffer_load_dwordx4 v{A.vDA+4}, s[8:11], s20 offen{m} lds", ('A', n)))
    out.append(I("s_add_u32 s20, s20, 40960"))
    return out
def fetch_b(A, n, qt):
    vb = A.vB + qt + (4 if n >= 48 else 0); m = (' ' + A.bmod) if A.bmod else ''
    return I(f"buffer_load_dwordx4 {R('a', bregs(A, n, qt), 4)}, v{vb}, s[12:15], s21 offen{m}", ('B', n))
def a_reads(A, n):
    sl = (n % A.D) * A.slot; r = A.vA + 20 * (n & 1)
    return [I(f"ds_read_b64_tr_b16 {R('v', r + 4*ct + 2*tt, 2)}, v{A.vRA} offset:{sl + 2560*tt + 32*ct}", ('R', n)) for ct in range(5) for tt in range(2)]
def step(A, n, N=60):
    acc = A.aS if n < 48 else A.aG
    pre = {}; post = {}; mf = []
    add = lambda d, g, it: d.setdefault(g, []).extend(it)
    for qt in range(4):
        for ct in range(5):
            d = R('a', acc + 16 * ct + 4 * qt, 4)
            mf.append(I(f"v_mfma_f32_16x16x32_bf16 {d}, {R('v', A.vA + 20*(n & 1) + 4*ct, 4)}, {R('a', bregs(A, n, qt), 4)}, {d}"))
        add(post, 5 * qt + 4, [fetch_b(A, n + A.D, qt)])
    add(pre, 0, [W(lgkm=[('R', n)], vm=[('B', n)])])
    add(post, 19, [I("s_add_u32 s21, s21, 1024")])
    dm = fetch_dma(A, n + A.D)
    pos = [0, 0, 1, 2, 3, 5, 5, 6]
    for g, it in zip(pos, dm): add(post, g, [it])
    if n + 1 < N:
        add(post, 7, [W(vm=[('A', n + 1)])])
        rd = a_reads(A, n + 1)
        for k, g in enumerate((7, 8, 10, 11, 12)): add(post, g, rd[2 * k:2 * k + 2])
    seq = []
    for g in range(20):
        seq += pre.get(g, []); seq.append(mf[g]); seq += post.get(g, [])
    return seq

def gen_k3(stamp=False, **kw):
    A = K3(**kw); T = A.vT; D = A.D
    assert 48 % D == 0 and 12 % D == 0 and D % 2 == 0
    s = f"""
s_cmp_ge_u32 s2, 256
s_cbranch_scc1 L_k3_end
s_load_dwordx2 s[4:5], s[0:1], 0
s_load_dwordx2 s[6:7], s[0:1], 32
s_load_dwordx4 s[40:43], s[0:1], 56
s_load_dwordx2 s[44:45], s[0:1], 80
v_and_b32 v1, 63, v0
v_lshrrev_b32 v{T}, 6, v0
s_nop 0
v_readfirstlane_b32 s25, v{T}
s_and_b32 s46, s2, 7
s_lshr_b32 s47, s2, 3
s_lshl_b32 s46, s46, 2
s_lshr_b32 s3, s47, 3
s_add_u32 s46, s46, s3
s_and_b32 s47, s47, 7
s_mul_i32 s47, s47, 160
s_mul_i32 s22, s25, {D*A.slot}
s_mul_i32 s20, s25, {48*40960}
s_mul_i32 s21, s25, {48*1024}
s_mul_i32 s48, s46, {4*192*1024}
s_mul_i32 s49, s46, {4*48*1024}
s_waitcnt lgkmcnt(0)
s_add_u32 s8, s6, s47
s_addc_u32 s9, s7, 0
s_sub_u32 s10, {6144*1280}, s47
s_mov_b32 s11, 0x00020000
s_add_u32 s48, s48, {OF_OFF}
s_add_u32 s12, s44, s48
s_addc_u32 s13, s45, 0
s_mov_b32 s14, {4*192*1024}
s_mov_b32 s15, 0x00020000
s_add_u32 s36, s40, s47
s_addc_u32 s37, s41, 0
s_add_u32 s49, s49, {HF_OFF}
s_add_u32 s38, s44, s49
s_addc_u32 s39, s45, 0
s_mov_b32 s28, s4
s_mov_b32 s29, s5
s_mov_b32 s30, 2621440
s_mov_b32 s31, 0x00020000
s_mov_b32 s32, s42
s_mov_b32 s33, s43
s_mov_b32 s34, 2621440
s_mov_b32 s35, 0x00020000
"""
    a = []
    for i in range(5):
        a += [f"v_add_u32 v{T}, {64*i}, v1", f"v_mul_u32_u24 v{T+1}, 0x199a, v{T}", f"v_lshrrev_b32 v{T+1}, 16, v{T+1}",
              f"v_mul_u32_u24 v{T+2}, 10, v{T+1}", f"v_sub_u32 v{T+2}, v{T}, v{T+2}", f"v_mul_u32_u24 v{T+1}, 1280, v{T+1}",
              f"v_lshl_add_u32 v{A.vDA+i}, v{T+2}, 4, v{T+1}"]
        if 0 < i < 4: a.append(f"v_subrev_u32 v{A.vDA+i}, {1024*i}, v{A.vDA+i}")
    a += [f"v_lshlrev_b32 v{T}, 4, v1"]
    for qt in range(4): a += [f"v_add_u32 v{A.vB+qt}, {qt*192*1024}, v{T}", f"v_add_u32 v{A.vB+4+qt}, {qt*48*1024}, v{T}"]
    a += [f"v_lshrrev_b32 v{T}, 2, v1", f"v_mul_u32_u24 v{T}, 160, v{T}", f"v_and_b32 v{T+1}, 3, v1",
          f"v_lshl_add_u32 v{T}, v{T+1}, 3, v{T}", f"v_add_u32 v{A.vRA}, s22, v{T}"]
    pro = L(s) + L("\n".join(a))
    if stamp: pro[2:2] = L("s_memrealtime s[60:61]")
    for n in range(D):
        d = fetch_dma(A, n)
        pro += [d[0], I("s_nop 0")] + d[1:5] + [d[5], I("s_nop 0")] + d[6:]
        pro += [fetch_b(A, n, qt) for qt in range(4)] + [I("s_add_u32 s21, s21, 1024")]
    pro += L(f"""s_lshl_b32 s3, s46, 6
s_lshl_b32 s50, s25, 4
s_add_u32 s3, s3, s50
v_and_b32 v{T}, 15, v1
v_add_u32 v{T}, s3, v{T}
v_mul_u32_u24 v{T}, 1280, v{T}
v_lshrrev_b32 v{T+1}, 4, v1
v_lshl_add_u32 v{T}, v{T+1}, 3, v{T}
v_add_u32 v{T+7}, s47, v{T}""")
    for ct in range(5): pro.append(I(f"buffer_load_dwordx2 {R('v', A.vX+2*ct, 2)}, v{T+7}, s[28:31], 0 offen offset:{32*ct}", 'X'))
    for i in range(160): pro.append(I(f"v_accvgpr_write_b32 a{i}, 0"))
    pro += [W(vm=[('A', 0)])] + a_reads(A, 0)
    steps = [step(A, n) for n in range(60)]
    sw = L(f"""s_mov_b32 s8, s36
s_mov_b32 s9, s37
s_sub_u32 s10, {1536*1280}, s47
s_mov_b32 s12, s38
s_mov_b32 s13, s39
s_mov_b32 s14, {4*48*1024}
s_mul_i32 s20, s25, {12*40960}
s_mul_i32 s21, s25, {12*1024}""")
    off = L(f"s_mov_b32 s20, 0x40000000\ns_mov_b32 s21, 0x40000000")
    e = [I("s_waitcnt vmcnt(0)"), I("s_barrier")]
    s = f"""v_lshlrev_b32 v{T}, 4, v1
s_mul_i32 s3, s25, {3*10240}
v_add_u32 v{T+1}, s3, v{T}"""
    e += L(s)
    for k in range(1, 4):
        e += L(f"s_add_u32 s3, s25, {k}\ns_and_b32 s3, s3, 3\ns_mul_i32 s50, s3, {3*10240}\ns_add_u32 s50, s50, {(3-k)*10240}\nv_add_u32 v{T+2}, s50, v{T}\ns_cmp_eq_u32 s3, 0\ns_cbranch_scc1 L_k3_w{k}_0\ns_cmp_eq_u32 s3, 1\ns_cbranch_scc1 L_k3_w{k}_1\ns_cmp_eq_u32 s3, 2\ns_cbranch_scc1 L_k3_w{k}_2")
        for q in (3, 0, 1, 2):
            if q != 3: e.append(I(f"L_k3_w{k}_{q}:"))
            for part, acc in enumerate((A.aS, A.aG)):
                for ct in range(5):
                    e.append(I(f"ds_write_b128 v{T+2}, {R('a', acc + 16*ct + 4*q, 4)} offset:{(5*part + ct)*1024}"))
            if q != 2: e.append(I(f"s_branch L_k3_w{k}_done"))
        e.append(I(f"L_k3_w{k}_done:"))
    Rr = A.vR
    e += L("s_cmp_eq_u32 s25, 0\ns_cbranch_scc1 L_k3_o0\ns_cmp_eq_u32 s25, 1\ns_cbranch_scc1 L_k3_o1\ns_cmp_eq_u32 s25, 2\ns_cbranch_scc1 L_k3_o2")
    for q in (3, 0, 1, 2):
        if q != 3: e.append(I(f"L_k3_o{q}:"))
        for part, acc in enumerate((A.aS, A.aG)):
            for ct in range(5):
                for k in range(4): e.append(I(f"v_accvgpr_read_b32 v{Rr + 20*part + 4*ct + k}, a{acc + 16*ct + 4*q + k}"))
        if q != 2: e.append(I("s_branch L_k3_odone"))
    e += L("L_k3_odone:\ns_waitcnt lgkmcnt(0)\ns_barrier")
    for k in range(3):
        for u in range(10): e.append(I(f"ds_read_b128 {R('v', Rr + 40*(k+1) + 4*u, 4)}, v{T+1} offset:{k*10240 + u*1024}", ('Z', k)))
    for k in range(3):
        e.append(W(lgkm=[('Z', k)]))
        for u in range(40): e.append(I(f"v_add_f32 v{Rr+u}, v{Rr+u}, v{Rr + 40*(k+1) + u}"))
    s = [f"s_mov_b32 s3, {f2u(1/CSC):#x}", f"s_mov_b32 s50, {f2u(-1.4426950408889634):#x}", "s_mov_b32 s51, 0xffff0000"]
    W0 = Rr + 40
    for ct in range(5):
        S = Rr + 4 * ct; Gv = Rr + 20 + 4 * ct; w = W0 + 8 * ct
        for k in range(4): s.append(f"v_mul_f32 v{Gv+k}, s3, v{Gv+k}")
        for p in range(2):
            s += [f"v_cvt_pk_bf16_f32 v{w+p}, v{Gv+2*p}, v{Gv+2*p+1}", f"v_cvt_pk_bf16_f32 v{w+2+p}, v{S+2*p}, v{S+2*p+1}"]
        for p in range(2):
            s += [f"v_lshlrev_b32 v{Gv+2*p}, 16, v{w+p}", f"v_and_b32 v{Gv+2*p+1}, s51, v{w+p}",
                  f"v_lshlrev_b32 v{S+2*p}, 16, v{w+2+p}", f"v_and_b32 v{S+2*p+1}, s51, v{w+2+p}"]
        for k in range(4): s.append(f"v_mul_f32 v{w+k}, s50, v{Gv+k}")
        for k in range(4): s.append(f"v_exp_f32 v{w+k}, v{w+k}")
        for k in range(4): s.append(f"v_add_f32 v{w+k}, 1.0, v{w+k}")
        for k in range(4): s.append(f"v_rcp_f32 v{w+k}, v{w+k}")
        for k in range(4): s.append(f"v_mul_f32 v{Gv+k}, v{Gv+k}, v{w+k}")
        for p in range(2): s.append(f"v_cvt_pk_bf16_f32 v{w+p}, v{Gv+2*p}, v{Gv+2*p+1}")
        for p in range(2): s += [f"v_lshlrev_b32 v{Gv+2*p}, 16, v{w+p}", f"v_and_b32 v{Gv+2*p+1}, s51, v{w+p}"]
        for k in range(4): s.append(f"v_mul_f32 v{S+k}, v{S+k}, v{Gv+k}")
        for p in range(2): s.append(f"v_cvt_pk_bf16_f32 v{w+p}, v{S+2*p}, v{S+2*p+1}")
        for p in range(2):
            x = A.vX + 2 * ct + p
            s += [f"v_lshlrev_b32 v{S+2*p}, 16, v{w+p}", f"v_and_b32 v{S+2*p+1}, s51, v{w+p}",
                  f"v_lshlrev_b32 v{Gv+2*p}, 16, v{x}", f"v_and_b32 v{Gv+2*p+1}, s51, v{x}"]
        for k in range(4): s.append(f"v_add_f32 v{S+k}, v{S+k}, v{Gv+k}")
        for p in range(2): s.append(f"v_cvt_pk_bf16_f32 v{w+4+p}, v{S+2*p}, v{S+2*p+1}")
        s.append(f"buffer_store_dwordx2 {R('v', w+4, 2)}, v{T+7}, s[32:35], 0 offen offset:{32*ct}")
    e += L("\n".join(s))
    if stamp:
        e += L(f"""s_memrealtime s[66:67]
s_waitcnt vmcnt(0)
s_memrealtime s[68:69]
s_getreg_b32 s3, hwreg(HW_REG_XCC_ID)
s_waitcnt lgkmcnt(0)
s_add_u32 s44, s44, 0x4100000
s_addc_u32 s45, s45, 0
s_lshl_b32 s50, s2, 2
s_add_u32 s50, s50, s25
s_lshl_b32 s50, s50, 5
v_mov_b32 v16, s60
v_mov_b32 v17, s62
v_mov_b32 v18, s64
v_mov_b32 v19, s66
v_mov_b32 v20, s68
v_mov_b32 v21, s3
v_mov_b32 v22, s3
v_mov_b32 v23, s3
v_mov_b32 v24, s50
global_store_dwordx4 v24, v[16:19], s[44:45]
global_store_dwordx4 v24, v[20:23], s[44:45] offset:16
s_waitcnt vmcnt(0)""")
        pro += L("s_memrealtime s[62:63]\ns_waitcnt lgkmcnt(0)")
        e[0:0] = L("s_memrealtime s[64:65]\ns_waitcnt lgkmcnt(0)")
    e += L("L_k3_end:\ns_endpgm")
    parts = [pro] + steps + [e]
    full = [i for p in parts for i in p]
    assign_waits(full)
    fix_hazards(parts)
    for m in check_hazards([i for p in parts for i in p]):
        if 'SCC' not in m: print(m)
    ST = [text(x) for x in steps]
    n1 = 48 // D; n2 = 12 // D
    b1 = "".join(ST[D:2 * D]); b2 = "".join(ST[48:48 + D])
    for k in range(n1 - 1): assert dominates(b1, "".join(ST[D*k:D*k + D])), k
    last1 = "".join(ST[48 - D:48])
    out = text(pro) + f"s_mov_b32 s24, {n1 - 1}\n.p2align 3\nL_k3_l1:\n" + b1 + "s_sub_u32 s24, s24, 1\ns_cmp_lg_u32 s24, 0\ns_cbranch_scc1 L_k3_l1\n"
    out += text(sw) + last1
    g = [ "".join(ST[48 + D*k:48 + D*k + D]) for k in range(n2)]
    for k in range(n2):
        if k == n2 - 1: out += text(off)
        out += g[k]
    out += text(e)
    A.report = gap_report(A, steps[8])
    return out, A
```

```python
import sys
from k1 import gen_k1
from k2 import gen_k2
from k3 import gen_k3
MAIN = "recurrent_scan__gqa_block_cached__dense_activation_relu__prompt_kernel"
def desc(name, vgpr, acc, sgpr=102):
    return f""".amdhsa_kernel {name}
  .amdhsa_next_free_vgpr {vgpr}
  .amdhsa_next_free_sgpr {sgpr}
  .amdhsa_accum_offset {acc}
  .amdhsa_group_segment_fixed_size 0
  .amdhsa_kernarg_size 88
  .amdhsa_user_sgpr_count 2
  .amdhsa_user_sgpr_kernarg_segment_ptr 1
  .amdhsa_system_sgpr_workgroup_id_x 1
  .amdhsa_float_denorm_mode_32 3
.end_amdhsa_kernel
"""
def kern(name, body): return f".globl {name}\n.p2align 8\n.type {name},@function\n{name}:\n{body}"
def gen(stamp=False, k2=None, k3=None, launches=(1, 2, 3)):
    b2, A2 = gen_k2(MAIN, stamp=stamp, **(k2 or {}))
    b3, A3 = gen_k3(stamp=stamp, **(k3 or {}))
    ll = {1: "; @launch kernel=ln_kernel grid=(128,1,1) block=(256,1,1) lds=1024",
          2: f"; @launch kernel={MAIN} grid=(256,1,1) block=(256,1,1) lds=163840",
          3: f"; @launch kernel=proj_kernel grid=(256,1,1) block=(256,1,1) lds={A3.D*A3.slot*4}"}
    hdr = "; Three launches: LayerNorm -> (Q projection + FFN1 + attention) -> (output projection + FFN2 + gate).\n"
    hdr += "; d_ws: [0, 2.5 MiB) normalised x fragments, [4 MiB, 28 MiB) attention output fragments, [32 MiB, 38 MiB) FFN hidden fragments\n"
    hdr += "\n".join(ll[k] for k in launches) + "\n"
    out = hdr + '.amdgcn_target "amdgcn-amd-amdhsa--gfx950"\n.text\n'
    out += kern("ln_kernel", gen_k1()) + kern(MAIN, b2) + kern("proj_kernel", b3)
    out += '.section .rodata,"a"\n.p2align 6\n' + desc("ln_kernel", 88, 88) + ".p2align 6\n" + desc(MAIN, 512, 256) + ".p2align 6\n" + desc("proj_kernel", 512, 256)
    return out
if __name__ == "__main__":
    o = gen()
    path = sys.argv[1] if len(sys.argv) > 1 else "recurrent_scan__gqa_block_cached__dense_activation_relu__prompt.s"
    open(path, "w").write(o)
    print(len(o), "bytes")
```
